```python
import torch

def _softmax(x, axis=-1):
    return torch.softmax(x, dim=axis)
def _gelu(x):
    return torch.nn.functional.gelu(x, approximate="tanh")
def _silu(x):
    return torch.nn.functional.silu(x)
def _sigmoid(x):
    return torch.sigmoid(x)
def _layernorm(x, axis=-1, eps=1e-5):
    m = x.mean(dim=axis, keepdim=True)
    v = x.var(dim=axis, keepdim=True, unbiased=False)
    return (x - m) / torch.sqrt(v + eps)
def _scatter_add(tgt, idx, src, axis=0):
    return tgt.clone().index_add_(axis, idx, src)
def _segment_sum(src, seg, n):
    out = torch.zeros((n,) + src.shape[1:], dtype=src.dtype)
    return out.index_add_(0, seg, src)
def _pad(x, pw):
    flat = tuple(v for pair in reversed(pw) for v in pair)
    return torch.nn.functional.pad(x, flat)

kernel_name = 'standalone__grouped__vision'

def setup_inputs():

    _w = (lambda a: (lambda t: t.to(torch.bfloat16) if t.is_floating_point() else t)(torch.as_tensor(a)))
    H = W = 224
    G = 4
    Cg = max(96 // G, 2)
    C = G * Cg
    k = 7
    scale = 1.0 / (k * Cg ** 0.5)
    return {
        "x": _w((lambda *s: torch.randn(*s, dtype=torch.bfloat16) * 0.05)(1, H, W, C)),
        "w": _w((lambda *s: torch.randn(*s, dtype=torch.bfloat16) * 0.05)(k, k, G, Cg, Cg) * scale),
    }

def reference(x, w):
    B, H, W, C = x.shape
    k = w.shape[0]
    G = w.shape[2]
    Cg = C // G
    pad = k // 2
    xp = _pad(x, ((0,0),(pad,pad),(pad,pad),(0,0)))
    xg = xp.reshape(B, H + 2 * pad, W + 2 * pad, G, Cg)
    out = torch.zeros_like(x).reshape(B, H, W, G, Cg)
    for i in range(k):
        for j in range(k):
            out = out + torch.einsum('bhwgc,gcd->bhwgd', xg[:, i:i+H, j:j+W, :, :], w[i, j])
    return out.reshape(B, H, W, C)
```

```python
import sys
DIAG = int(sys.argv[2]) if len(sys.argv) > 2 else 0
NAME = "standalone__grouped__vision_kernel"

P = 129
PB = P * 16
XBASE = 0
XSIZE = 34 * PB
WBLK = 8320
WBASE = XSIZE
LDS_TOTAL = WBASE + 9 * WBLK
ROWB = 43008
XBYTES = 224 * 224 * 192
WBYTES = 49 * 4 * 24 * 24 * 2
R = 4

CH = [[3*q + 0 for q in range(4)], [3*q + 1 for q in range(4)], [3*q + 2 for q in range(4)],
      [12, 15, 13, 16], [14, 17, 18, 19]]
def T(c):
    return 12 * (c // 3) + (c % 3)
def packT(lst):
    return sum(T(c) << (8 * k) for k, c in enumerate(lst))
def packC(lst):
    return sum(c << (8 * k) for k, c in enumerate(lst))

out = []
def E(s): out.append("    " + s)
def L(s): out.append(s + ":")
def C(s): out.append("    ; " + s)

frags = [('A', i, s) for i in range(7) for s in range(5)] + [('B', r, s) for r in range(8) for s in range(5)] \
      + [('AL', b) for b in (0, 4, -1, 3)] + [('BL', b) for b in (0, 4)]
WREG = {}
VW0 = 188
for k, f in enumerate(frags):
    if k < 64: WREG[f] = ('a', 4 * k)
    else: WREG[f] = ('v', VW0 + 4 * (k - 64))
def wr(f, lo=0, n=4):
    t, b = WREG[f]
    return f"{t}[{b+lo}:{b+lo+n-1}]"

vLANE, vQ, vN = 1, 2, 3
vT = list(range(4, 16))
vXD, vW0, vW1 = 16, 17, 18
vA, vB, vLA, vLB = 19, 20, 21, 22
vU = {u: {n: 24 + 6 * u + k for k, n in enumerate(['X0', 'X3', 'X4', 'XL', 'OA', 'OB'])} for u in range(4)}
vACC = 48
NX = 10
vXB = 72
vCV = 112
sX, sW, sO = 12, 16, 20
sG, sH0, sW0, sWV = 24, 25, 26, 27
sXS, sXM, sWM = 28, 29, 30
sT = list(range(32, 44))
sROW = 44
sST = 60

nstamp = [0]
def stamp():
    if not DIAG: return
    E(f"s_memtime s[{sST+2*nstamp[0]}:{sST+2*nstamp[0]+1}]")
    E("s_waitcnt lgkmcnt(0)")
    nstamp[0] += 1

hdr = f"""; grouped 7x7 conv, weights-stationary MFMA kernel (generated)
; @launch grid=(256,1,1) block=(256,1,1) lds={LDS_TOTAL}
.amdgcn_target "amdgcn-amd-amdhsa--gfx950"
.text
.globl {NAME}
.p2align 8
.type {NAME},@function
{NAME}:"""

E("s_cmp_ge_u32 s2, 256")
E("s_cbranch_scc1 L_end")
E("s_load_dwordx4 s[4:7], s[0:1], 0")
E("s_load_dwordx2 s[8:9], s[0:1], 16")
if DIAG:
    E("s_load_dwordx2 s[10:11], s[0:1], 32")
    E(f"s_memrealtime s[{sST}:{sST+1}]")
    E(f"s_memtime s[{sST+2}:{sST+3}]")
    nstamp[0] = 2
E(f"v_lshrrev_b32 v{vT[0]}, 6, v0")
E(f"v_and_b32 v{vLANE}, 63, v0")
E(f"v_readfirstlane_b32 s{sWV}, v{vT[0]}")
C("tile decode: xcd = b&7 -> ty ; k=b>>3: g = k&3, tx = k>>2")
E(f"s_and_b32 s{sT[0]}, s2, 7")
E(f"s_mul_i32 s{sH0}, s{sT[0]}, 28")
E(f"s_lshr_b32 s{sT[0]}, s2, 3")
E(f"s_and_b32 s{sG}, s{sT[0]}, 3")
E(f"s_lshr_b32 s{sT[0]}, s{sT[0]}, 2")
E(f"s_mul_i32 s{sW0}, s{sT[0]}, 28")
E(f"v_lshrrev_b32 v{vQ}, 4, v{vLANE}")
E(f"v_and_b32 v{vN}, 15, v{vLANE}")

C("x DMA voffset: e = 64*(wave&1)+lane = tid&127; col=e/3; o=e%3")
t0, t1, t2, t3, t4, t5 = vT[:6]
E(f"v_and_b32 v{t0}, 127, v0")
E(f"v_mul_u32_u24 v{t1}, 171, v{t0}")
E(f"v_lshrrev_b32 v{t1}, 9, v{t1}")
E(f"s_add_i32 s{sT[1]}, s{sW0}, -3")
E(f"v_add_u32 v{t2}, s{sT[1]}, v{t1}")
E(f"v_mul_u32_u24 v{t3}, 144, v{t1}")
E(f"v_lshl_add_u32 v{t3}, v{t0}, 4, v{t3}")
E(f"s_mul_i32 s{sT[2]}, s{sT[1]}, 192")
E(f"s_mul_i32 s{sT[3]}, s{sG}, 48")
E(f"s_add_i32 s{sT[2]}, s{sT[2]}, s{sT[3]}")
E(f"v_add_u32 v{t3}, s{sT[2]}, v{t3}")
E(f"s_movk_i32 s{sT[4]}, 224")
E(f"v_cmp_gt_u32 vcc, s{sT[4]}, v{t2}")
E(f"s_movk_i32 s{sT[5]}, 102")
E(f"v_cmp_gt_u32 s[{sT[6]}:{sT[7]}], s{sT[5]}, v{t0}")
E(f"v_bfrev_b32 v{t4}, 1")
E(f"s_and_b64 vcc, vcc, s[{sT[6]}:{sT[7]}]")
E("s_nop 1")
E(f"v_cndmask_b32 v{vXD}, v{t4}, v{t3}, vcc")

C("weights DMA voffsets")
def aform(dst, sconst):
    E(f"v_bfe_u32 v{t0}, v{vLANE}, 3, 2")
    E(f"v_lshlrev_b32 v{t0}, 3, v{t0}")
    E(f"v_bfe_u32 v{t0}, s{sconst}, v{t0}, 8")
    E(f"v_mul_u32_u24 v{t0}, 384, v{t0}")
    E(f"v_lshrrev_b32 v{t1}, 5, v{vLANE}")
    E(f"v_bfe_u32 v{t2}, v{vLANE}, 1, 2")
    E(f"v_lshl_add_u32 v{t1}, v{t1}, 2, v{t2}")
    E(f"v_mad_u32_u24 v{t0}, v{t1}, 48, v{t0}")
    E(f"v_and_b32 v{t1}, 1, v{vLANE}")
    E(f"v_lshl_add_u32 v{dst}, v{t1}, 4, v{t0}")
E(f"s_mul_i32 s{sT[0]}, s{sWV}, 0x01010101")
E(f"s_add_u32 s{sT[0]}, s{sT[0]}, {packT(CH[0]):#x}")
E(f"s_cmp_eq_u32 s{sWV}, 3")
E(f"s_cselect_b32 s{sT[0]}, {packT(CH[3]):#x}, s{sT[0]}")
aform(vW0, sT[0])
E(f"s_cmp_lg_u32 s{sWV}, 0")
E("s_cbranch_scc1 L_bform")
E(f"s_mov_b32 s{sT[0]}, {packT(CH[4]):#x}")
aform(vW1, sT[0])
E("s_branch L_wdone")
L("L_bform")
E(f"s_mov_b32 s{sT[0]}, {packT(CH[0]):#x}")
E(f"s_mov_b32 s{sT[1]}, {packT(CH[1]):#x}")
E(f"s_cmp_eq_u32 s{sWV}, 2")
E(f"s_cselect_b32 s{sT[0]}, {packT(CH[2]):#x}, s{sT[0]}")
E(f"s_cselect_b32 s{sT[1]}, {packT(CH[3]):#x}, s{sT[1]}")
E(f"s_cmp_eq_u32 s{sWV}, 3")
E(f"s_cselect_b32 s{sT[0]}, {packT(CH[4]):#x}, s{sT[0]}")
E(f"s_cselect_b32 s{sT[1]}, {packT([20]*4):#x}, s{sT[1]}")
E(f"v_mov_b32 v{t3}, s{sT[0]}")
E(f"v_mov_b32 v{t4}, s{sT[1]}")
E(f"v_cmp_gt_u32 vcc, 32, v{vLANE}")
E(f"v_bfe_u32 v{t5}, v{vLANE}, 2, 2")
E(f"v_lshlrev_b32 v{t0}, 3, v{t5}")
E(f"v_cndmask_b32 v{t3}, v{t4}, v{t3}, vcc")
E(f"v_bfe_u32 v{t0}, v{t3}, v{t0}, 8")
E(f"v_mul_u32_u24 v{t0}, 384, v{t0}")
E(f"v_bfe_u32 v{t1}, v{vLANE}, 4, 1")
E(f"v_and_b32 v{t2}, 3, v{vLANE}")
E(f"v_lshl_add_u32 v{t1}, v{t1}, 2, v{t2}")
E(f"v_mad_u32_u24 v{t0}, v{t1}, 48, v{t0}")
E(f"s_movk_i32 s{sT[2]}, 224")
E(f"v_cmp_gt_u32 vcc, s{sT[2]}, v0")
E("s_nop 1")
E(f"v_cndmask_b32 v{t5}, v{t5}, 2, vcc")
E(f"v_lshl_add_u32 v{vW1}, v{t5}, 4, v{t0}")
L("L_wdone")

C("SRDs")
E("s_waitcnt lgkmcnt(0)")
E(f"s_mov_b32 s{sX}, s4")
E(f"s_and_b32 s{sX+1}, s5, 0xffff")
E(f"s_mov_b32 s{sX+2}, {XBYTES}")
E(f"s_mov_b32 s{sX+3}, 0x20000")
E(f"s_mul_i32 s{sT[0]}, s{sG}, 1152")
E(f"s_add_u32 s{sW}, s6, s{sT[0]}")
E(f"s_addc_u32 s{sW+1}, s7, 0")
E(f"s_and_b32 s{sW+1}, s{sW+1}, 0xffff")
E(f"s_sub_u32 s{sW+2}, {WBYTES}, s{sT[0]}")
E(f"s_mov_b32 s{sW+3}, 0x20000")
E(f"s_mov_b32 s{sO}, s8")
E(f"s_and_b32 s{sO+1}, s9, 0xffff")
E(f"s_mov_b32 s{sO+2}, {XBYTES}")
E(f"s_mov_b32 s{sO+3}, 0x20000")
C("DMA bases")
E(f"s_lshr_b32 s{sT[0]}, s{sWV}, 1")
E(f"s_add_i32 s{sT[1]}, s{sH0}, s{sT[0]}")
E(f"s_add_i32 s{sT[1]}, s{sT[1]}, -3")
E(f"s_mul_i32 s{sXS}, s{sT[1]}, {ROWB}")
E(f"s_mul_i32 s{sXM}, s{sT[0]}, {PB}")
E(f"s_and_b32 s{sT[1]}, s{sWV}, 1")
E(f"s_lshl_b32 s{sT[1]}, s{sT[1]}, 10")
E(f"s_add_u32 s{sXM}, s{sXM}, s{sT[1]}")
E(f"s_lshl_b32 s{sWM}, s{sWV}, 10")
E(f"s_add_u32 s{sWM}, s{sWM}, {WBASE}")

def dma_x(rowE):
    E(f"s_add_u32 m0, s{sXM}, {XBASE + rowE * PB}")
    E(f"s_add_i32 s{sT[8]}, s{sXS}, {rowE * ROWB}")
    E(f"buffer_load_dwordx4 v{vXD}, s[{sX}:{sX+3}], s{sT[8]} offen lds")
def dma_w(i, second, src_i=None):
    if src_i is None: src_i = i
    E(f"s_add_u32 m0, s{sWM}, {(i + 1) * WBLK + (4096 if second else 0)}")
    E(f"s_mov_b32 s{sT[9]}, {src_i * 32256}")
    E(f"buffer_load_dwordx4 v{vW1 if second else vW0}, s[{sW}:{sW+3}], s{sT[9]} offen lds")
stamp()
xorder = [0, 4, 8, 2, 6, 10] + list(range(12, 34, 2))
dma_w(0, 0); dma_w(0, 1); dma_w(-1, 1, 7)
dma_x(0); dma_x(4); dma_x(8)
dma_w(1, 0); dma_w(1, 1)
dma_w(2, 0); dma_w(2, 1)
dma_x(2); dma_x(6); dma_x(10)
for i in range(3, 7):
    dma_w(i, 0); dma_w(i, 1)
dma_w(7, 1, 7)
for r in range(12, 34, 2): dma_x(r)
stamp()

C("weight LDS read addresses")
E(f"v_lshlrev_b32 v{vA}, 3, v{vLANE}")
E(f"v_add_u32 v{vA}, {WBASE + WBLK}, v{vA}")
E(f"v_bfe_u32 v{t0}, v{vLANE}, 2, 2")
E(f"v_and_b32 v{t1}, 1, v{vLANE}")
E(f"v_bfe_u32 v{t2}, v{vLANE}, 1, 1")
E(f"v_lshlrev_b32 v{t0}, 4, v{t0}")
E(f"v_lshl_add_u32 v{t0}, v{t1}, 3, v{t0}")
E(f"s_movk_i32 s{sT[0]}, {WBLK}")
E(f"v_mul_u32_u24 v{t3}, s{sT[0]}, v{t2}")
E(f"v_mul_u32_u24 v{t4}, s{sT[0]}, v{vQ}")
E(f"v_lshl_add_u32 v{vB}, v{vQ}, 6, v{t0}")
E(f"v_sub_u32 v{vB}, v{vB}, v{t3}")
E(f"v_add_u32 v{vB}, {WBASE + WBLK + 5120}, v{vB}")
E(f"v_lshl_add_u32 v{vLA}, v{t2}, 6, v{t0}")
E(f"v_add_u32 v{vLA}, v{vLA}, v{t4}")
E(f"v_add_u32 v{vLA}, {WBASE + 7680}, v{vLA}")
E(f"v_add_u32 v{vLB}, v{t0}, v{t4}")
E(f"v_sub_u32 v{vLB}, v{vLB}, v{t3}")
E(f"v_add_u32 v{vLB}, {WBASE + WBLK + 7680 + 128}, v{vLB}")

C("per-unit x read / out addresses")
q8 = vT[6]; c3 = vT[7]; c4 = vT[8]; cL = vT[9]; c0 = vT[10]; ob = vT[11]
E(f"v_lshlrev_b32 v{q8}, 3, v{vQ}")
E(f"s_mov_b32 s{sT[0]}, {packC(CH[3]):#x}")
E(f"s_mov_b32 s{sT[1]}, {packC(CH[4]):#x}")
E(f"v_bfe_u32 v{c3}, s{sT[0]}, v{q8}, 8")
E(f"v_bfe_u32 v{c4}, s{sT[1]}, v{q8}, 8")
E(f"v_lshlrev_b32 v{c3}, 4, v{c3}")
E(f"v_lshlrev_b32 v{c4}, 4, v{c4}")
E(f"v_mul_u32_u24 v{c0}, 48, v{vQ}")
E(f"s_movk_i32 s{sT[2]}, {PB}")
E(f"v_mul_u32_u24 v{cL}, s{sT[2]}, v{vQ}")
E(f"v_add_u32 v{cL}, 320, v{cL}")
E(f"v_lshrrev_b32 v{t0}, 1, v{vQ}")
E(f"s_mov_b32 s{sT[3]}, {ROWB}")
E(f"v_mul_u32_u24 v{t0}, s{sT[3]}, v{t0}")
E(f"v_and_b32 v{t1}, 1, v{vQ}")
E(f"v_lshl_add_u32 v{ob}, v{t1}, 3, v{t0}")
E(f"v_add_u32 v{ob}, 32, v{ob}")
E(f"s_mul_i32 s{sT[4]}, s{sH0}, {ROWB}")
E(f"s_mul_i32 s{sT[5]}, s{sW0}, 192")
E(f"s_add_u32 s{sT[4]}, s{sT[4]}, s{sT[5]}")
E(f"s_mul_i32 s{sT[5]}, s{sG}, 48")
E(f"s_add_u32 s{sT[4]}, s{sT[4]}, s{sT[5]}")
E(f"s_lshl_b32 s{sT[5]}, s{sWV}, 4")
E(f"s_movk_i32 s{sT[6]}, {4 * PB - 28 * 48}")
E(f"s_mov_b32 s{sT[7]}, {4 * ROWB - 28 * 192}")
for u in range(4):
    if u < 3:
        E(f"s_add_u32 s{sT[8]}, s{sT[5]}, {64 * u + 4}")
        E(f"v_add_u32 v{t0}, s{sT[8]}, v{vN}")
        E(f"v_mul_u32_u24 v{t1}, 0x925, v{t0}")
        E(f"v_lshrrev_b32 v{t1}, 16, v{t1}")
        E(f"v_mul_u32_u24 v{t2}, 48, v{t0}")
        E(f"v_mad_u32_u24 v{t2}, v{t1}, s{sT[6]}, v{t2}")
        E(f"v_mul_u32_u24 v{t3}, 192, v{t0}")
        E(f"v_mad_u32_u24 v{t3}, v{t1}, s{sT[7]}, v{t3}")
    else:
        E(f"v_lshrrev_b32 v{t1}, 2, v{vN}")
        E(f"v_and_b32 v{t0}, 3, v{vN}")
        E(f"v_mul_u32_u24 v{t2}, 48, v{t0}")
        E(f"v_mad_u32_u24 v{t2}, v{t1}, s{sT[2]}, v{t2}")
        E(f"v_mul_u32_u24 v{t3}, 192, v{t0}")
        E(f"v_mad_u32_u24 v{t3}, v{t1}, s{sT[3]}, v{t3}")
    if XBASE: E(f"v_add_u32 v{t2}, {XBASE}, v{t2}")
    E(f"v_add_u32 v{vU[u]['X0']}, v{t2}, v{c0}")
    E(f"v_add_u32 v{vU[u]['X3']}, v{t2}, v{c3}")
    E(f"v_add_u32 v{vU[u]['X4']}, v{t2}, v{c4}")
    E(f"v_add_u32 v{vU[u]['XL']}, v{t2}, v{cL}")
    E(f"v_add_u32 v{t3}, s{sT[4]}, v{t3}")
    E(f"v_add_u32 v{vU[u]['OA']}, v{t3}, v{q8}")
    E(f"v_add_u32 v{vU[u]['OB']}, v{t3}, v{ob}")
    if u == 3:
        E(f"v_cmp_gt_u32 vcc, 2, v{vQ}")
        E(f"v_bfrev_b32 v{t4}, 1")
        E("s_nop 0")
        E(f"v_cndmask_b32 v{vU[u]['OB']}, v{t4}, v{vU[u]['OB']}, vcc")
for h in range(4):
    E(f"s_mov_b32 s{sROW + h}, {h * ROWB}")

stamp()
E("s_waitcnt vmcnt(0)")
stamp()
E("s_barrier")
stamp()
C("load weights to registers")
def wload(f):
    res = []
    for hf in range(2):
        if f[0] == 'A': a, off = vA, WBLK * f[1] + 1024 * f[2] + 512 * hf
        elif f[0] == 'B': a, off = vB, WBLK * f[1] + 512 * f[2] + 256 * hf
        elif f[0] == 'AL': a, off = vLA, WBLK * (f[1] + 1) + 256 * hf
        else: a, off = vLB, WBLK * f[1] + 256 * hf
        res.append(f"ds_read_b64_tr_b16 {wr(f, 2 * hf, 2)}, v{a} offset:{off}")
    return res
for f in frags:
    for s in wload(f): E(s)
E("s_waitcnt lgkmcnt(0)")
stamp()

def acc(t): return f"v[{vACC + 4 * t}:{vACC + 4 * t + 3}]"
TILE = {('A', 0): 0, ('A', 1): 1, ('A', 2): 2, ('A', 3): 3, ('B', 0): 4, ('B', 1): 5}

def unit_groups(u, mode):
    a = vU[u]
    groups = []
    tiles = [('A', h) for h in range(R)] + [('B', k) for k in range(R // 2)]
    nrow = R + 6
    if mode == 'LA': tiles = [('A', 0)]; nrow = 7
    if mode == 'LB': tiles = [('B', 0)]; nrow = 7
    for r in range(nrow):
        for s in range(5):
            if s < 3: rd = (a['X0'], r * PB + 16 * s)
            elif s == 3: rd = (a['X3'], r * PB)
            else: rd = (a['X4'], r * PB)
            ms = []
            for t in tiles:
                if t[0] == 'A':
                    i = r - t[1]
                    if 0 <= i <= 6: ms.append((t, ('A', i, s)))
                else:
                    i = r - 2 * t[1]
                    if 0 <= i <= 7: ms.append((t, ('B', i, s)))
            groups.append((rd, ms))
        for k in range(R // 2):
            for half in range(2):
                r0 = 2 * k + 4 * half
                when = min(r0 + 3, 2 * k + 6)
                if when != r: continue
                ms = []
                for t in tiles:
                    if t == ('A', 2 * k): ms.append((t, ('AL', 4 * half)))
                    if t == ('A', 2 * k + 1): ms.append((t, ('AL', 4 * half - 1)))
                    if t == ('B', k): ms.append((t, ('BL', 4 * half)))
                if ms: groups.append(((a['XL'], r0 * PB), ms))
    return groups

def emit_stream(units):
    G = []
    for (u, mode) in units:
        g = unit_groups(u, mode)
        cnt = {}
        for rd, ms in g:
            for t, w in ms: cnt[t] = cnt.get(t, 0) + 1
        seen = {}
        for rd, ms in g:
            mm = []
            for t, w in ms:
                seen[t] = seen.get(t, 0) + 1
                mm.append((u, t, w, seen[t] == 1, seen[t] == cnt[t]))
            G.append((rd, mm))
    PRE = NX - 2
    issued = 0
    def xreg(k): return f"v[{vXB + 4 * (k % NX)}:{vXB + 4 * (k % NX) + 3}]"
    def issue():
        nonlocal issued
        if issued < len(G):
            (a, off), _ = G[issued]
            E(f"ds_read_b128 {xreg(issued)}, v{a} offset:{off}")
            issued += 1
    for _ in range(min(PRE, len(G))): issue()
    pending = []
    def tick():
        for p in pending: p[0] -= 1
        while pending and pending[0][0] <= 0:
            p = pending.pop(0)
            for s in p[1]: E(s)
            break
    for k, (rd, ms) in enumerate(G):
        E(f"s_waitcnt lgkmcnt({min(15, issued - k - 1)})")
        for n, (u, t, w, first, last) in enumerate(ms):
            ti = TILE[t]
            E(f"v_mfma_f32_16x16x32_bf16 {acc(ti)}, {wr(w)}, {xreg(k)}, {'0' if first else acc(ti)}")
            if n == 0: issue()
            tick()
            if last:
                b = vACC + 4 * ti; c = vCV + 2 * ti
                od = vU[u]['OA'] if t[0] == 'A' else vU[u]['OB']
                so = sROW + (t[1] if t[0] == 'A' else 2 * t[1])
                pending.append([8, [f"v_cvt_pk_bf16_f32 v{c}, v{b}, v{b+1}"]])
                pending.append([8, [f"v_cvt_pk_bf16_f32 v{c+1}, v{b+2}, v{b+3}"]])
                pending.append([8, [f"buffer_store_dwordx2 v[{c}:{c+1}], v{od}, s[{sO}:{sO+3}], s{so} offen"]])
    if pending:
        E("s_nop 7")
        for p in pending:
            for s in p[1]: E(s)

emit_stream([(0, 'F'), (1, 'F'), (2, 'F')])
stamp()
E(f"s_cmp_eq_u32 s{sWV}, 0")
E("s_cbranch_scc1 L_la")
E(f"s_cmp_eq_u32 s{sWV}, 1")
E("s_cbranch_scc0 L_fin")
emit_stream([(3, 'LB')])
E("s_branch L_fin")
L("L_la")
emit_stream([(3, 'LA')])
L("L_fin")
stamp()
if DIAG:
    E("s_waitcnt vmcnt(0)")
    stamp()
    E(f"s_memrealtime s[{sST+2*nstamp[0]}:{sST+2*nstamp[0]+1}]")
    nstamp[0] += 1
    E(f"s_getreg_b32 s{sST+2*nstamp[0]}, hwreg(HW_REG_XCC_ID)")
    E(f"s_getreg_b32 s{sST+2*nstamp[0]+1}, hwreg(HW_REG_HW_ID)")
    nstamp[0] += 1
    E("s_waitcnt lgkmcnt(0)")
    E(f"s_mov_b32 s{sX}, s10")
    E(f"s_and_b32 s{sX+1}, s11, 0xffff")
    E(f"s_mov_b32 s{sX+2}, 0x100000")
    E(f"s_mov_b32 s{sX+3}, 0x20000")
    E(f"s_lshl_b32 s{sT[0]}, s2, 2")
    E(f"s_add_u32 s{sT[0]}, s{sT[0]}, s{sWV}")
    E(f"s_lshl_b32 s{sT[0]}, s{sT[0]}, 8")
    E(f"v_lshlrev_b32 v4, 20, v{vLANE}")
    for k in range(nstamp[0]):
        E(f"v_mov_b32 v6, s{sST + 2 * k}")
        E(f"v_mov_b32 v7, s{sST + 2 * k + 1}")
        E(f"buffer_store_dwordx2 v[6:7], v4, s[{sX}:{sX+3}], s{sT[0]} offen offset:{8 * k}")
        E("s_nop 1")
L("L_end")
E("s_endpgm")

tail = f""".section .rodata,"a"
.p2align 6
.amdhsa_kernel {NAME}
  .amdhsa_next_free_vgpr 512
  .amdhsa_next_free_sgpr 102
  .amdhsa_accum_offset 256
  .amdhsa_group_segment_fixed_size 0
  .amdhsa_kernarg_size 40
  .amdhsa_user_sgpr_count 2
  .amdhsa_user_sgpr_kernarg_segment_ptr 1
  .amdhsa_system_sgpr_workgroup_id_x 1
.end_amdhsa_kernel
"""
open(sys.argv[1], "w").write(hdr + "\n" + "\n".join(out) + "\n" + tail)
print("LDS", LDS_TOTAL, "lines", len(out), "stamps", nstamp[0])
```

```python
import sys
DIAG = int(sys.argv[2]) if len(sys.argv) > 2 else 0
NAME = "standalone__grouped__vision_kernel"

P = 129
PB = P * 16
XBASE = 0
XSIZE = 34 * PB
WBLK = 8320
WBASE = XSIZE
LDS_TOTAL = WBASE + 9 * WBLK
ROWB = 43008
XBYTES = 224 * 224 * 192
WBYTES = 49 * 4 * 24 * 24 * 2
R = 4

CH = [[3*q + 0 for q in range(4)], [3*q + 1 for q in range(4)], [3*q + 2 for q in range(4)],
      [12, 15, 13, 16], [14, 17, 18, 19]]
def T(c):
    return 12 * (c // 3) + (c % 3)
def packT(lst):
    return sum(T(c) << (8 * k) for k, c in enumerate(lst))
def packC(lst):
    return sum(c << (8 * k) for k, c in enumerate(lst))

out = []
def E(s): out.append("    " + s)
def L(s): out.append(s + ":")
def C(s): out.append("    ; " + s)

frags = [('A', i, s) for i in range(7) for s in range(5)] + [('B', r, s) for r in range(8) for s in range(5)] \
      + [('AL', b) for b in (0, 4, -1, 3)] + [('BL', b) for b in (0, 4)]
WREG = {}
VW0 = 188
for k, f in enumerate(frags):
    if k < 64: WREG[f] = ('a', 4 * k)
    else: WREG[f] = ('v', VW0 + 4 * (k - 64))
def wr(f, lo=0, n=4):
    t, b = WREG[f]
    return f"{t}[{b+lo}:{b+lo+n-1}]"

vLANE, vQ, vN = 1, 2, 3
vT = list(range(4, 16))
vXD, vW0, vW1 = 16, 17, 18
vA, vB, vLA, vLB = 19, 20, 21, 22
vU = {u: {n: 24 + 6 * u + k for k, n in enumerate(['X0', 'X3', 'X4', 'XL', 'OA', 'OB'])} for u in range(4)}
vACC = 48
NX = 10
vXB = 72
vCV = 112
sX, sW, sO = 12, 16, 20
sG, sH0, sW0, sWV = 24, 25, 26, 27
sXS, sXM, sWM = 28, 29, 30
sT = list(range(32, 44))
sROW = 44
sST = 60

nstamp = [0]
def stamp():
    if not DIAG: return
    E(f"s_memtime s[{sST+2*nstamp[0]}:{sST+2*nstamp[0]+1}]")
    E("s_waitcnt lgkmcnt(0)")
    nstamp[0] += 1

hdr = f"""; grouped 7x7 conv, weights-stationary MFMA kernel (generated)
; @launch grid=(256,1,1) block=(256,1,1) lds={LDS_TOTAL}
.amdgcn_target "amdgcn-amd-amdhsa--gfx950"
.text
.globl {NAME}
.p2align 8
.type {NAME},@function
{NAME}:"""

E("s_cmp_ge_u32 s2, 256")
E("s_cbranch_scc1 L_end")
E("s_load_dwordx4 s[4:7], s[0:1], 0")
E("s_load_dwordx2 s[8:9], s[0:1], 16")
if DIAG:
    E("s_load_dwordx2 s[10:11], s[0:1], %d" % (32 if DIAG == 1 else 24))
    E(f"s_memrealtime s[{sST}:{sST+1}]")
    E(f"s_memtime s[{sST+2}:{sST+3}]")
    nstamp[0] = 2
E(f"v_lshrrev_b32 v{vT[0]}, 6, v0")
E(f"v_and_b32 v{vLANE}, 63, v0")
E(f"v_readfirstlane_b32 s{sWV}, v{vT[0]}")
C("tile decode: xcd = b&7 -> ty ; k=b>>3: g = k&3, tx = k>>2")
E(f"s_and_b32 s{sT[0]}, s2, 7")
E(f"s_mul_i32 s{sH0}, s{sT[0]}, 28")
E(f"s_lshr_b32 s{sT[0]}, s2, 3")
E(f"s_and_b32 s{sG}, s{sT[0]}, 3")
E(f"s_lshr_b32 s{sT[0]}, s{sT[0]}, 2")
E(f"s_mul_i32 s{sW0}, s{sT[0]}, 28")
E(f"v_lshrrev_b32 v{vQ}, 4, v{vLANE}")
E(f"v_and_b32 v{vN}, 15, v{vLANE}")

C("x DMA voffset: e = 64*(wave&1)+lane = tid&127; col=e/3; o=e%3")
t0, t1, t2, t3, t4, t5 = vT[:6]
E(f"v_and_b32 v{t0}, 127, v0")
E(f"v_mul_u32_u24 v{t1}, 171, v{t0}")
E(f"v_lshrrev_b32 v{t1}, 9, v{t1}")
E(f"s_add_i32 s{sT[1]}, s{sW0}, -3")
E(f"v_add_u32 v{t2}, s{sT[1]}, v{t1}")
E(f"v_mul_u32_u24 v{t3}, 144, v{t1}")
E(f"v_lshl_add_u32 v{t3}, v{t0}, 4, v{t3}")
E(f"s_mul_i32 s{sT[2]}, s{sT[1]}, 192")
E(f"s_mul_i32 s{sT[3]}, s{sG}, 48")
E(f"s_add_i32 s{sT[2]}, s{sT[2]}, s{sT[3]}")
E(f"v_add_u32 v{t3}, s{sT[2]}, v{t3}")
E(f"s_movk_i32 s{sT[4]}, 224")
E(f"v_cmp_gt_u32 vcc, s{sT[4]}, v{t2}")
E(f"s_movk_i32 s{sT[5]}, 102")
E(f"v_cmp_gt_u32 s[{sT[6]}:{sT[7]}], s{sT[5]}, v{t0}")
E(f"v_bfrev_b32 v{t4}, 1")
E(f"s_and_b64 vcc, vcc, s[{sT[6]}:{sT[7]}]")
E("s_nop 1")
E(f"v_cndmask_b32 v{vXD}, v{t4}, v{t3}, vcc")

C("weights DMA voffsets")
def aform(dst, sconst):
    E(f"v_bfe_u32 v{t0}, v{vLANE}, 3, 2")
    E(f"v_lshlrev_b32 v{t0}, 3, v{t0}")
    E(f"v_bfe_u32 v{t0}, s{sconst}, v{t0}, 8")
    E(f"v_mul_u32_u24 v{t0}, 384, v{t0}")
    E(f"v_lshrrev_b32 v{t1}, 5, v{vLANE}")
    E(f"v_bfe_u32 v{t2}, v{vLANE}, 1, 2")
    E(f"v_lshl_add_u32 v{t1}, v{t1}, 2, v{t2}")
    E(f"v_mad_u32_u24 v{t0}, v{t1}, 48, v{t0}")
    E(f"v_and_b32 v{t1}, 1, v{vLANE}")
    E(f"v_lshl_add_u32 v{dst}, v{t1}, 4, v{t0}")
E(f"s_mul_i32 s{sT[0]}, s{sWV}, 0x01010101")
E(f"s_add_u32 s{sT[0]}, s{sT[0]}, {packT(CH[0]):#x}")
E(f"s_cmp_eq_u32 s{sWV}, 3")
E(f"s_cselect_b32 s{sT[0]}, {packT(CH[3]):#x}, s{sT[0]}")
aform(vW0, sT[0])
E(f"s_cmp_lg_u32 s{sWV}, 0")
E("s_cbranch_scc1 L_bform")
E(f"s_mov_b32 s{sT[0]}, {packT(CH[4]):#x}")
aform(vW1, sT[0])
E("s_branch L_wdone")
L("L_bform")
E(f"s_mov_b32 s{sT[0]}, {packT(CH[0]):#x}")
E(f"s_mov_b32 s{sT[1]}, {packT(CH[1]):#x}")
E(f"s_cmp_eq_u32 s{sWV}, 2")
E(f"s_cselect_b32 s{sT[0]}, {packT(CH[2]):#x}, s{sT[0]}")
E(f"s_cselect_b32 s{sT[1]}, {packT(CH[3]):#x}, s{sT[1]}")
E(f"s_cmp_eq_u32 s{sWV}, 3")
E(f"s_cselect_b32 s{sT[0]}, {packT(CH[4]):#x}, s{sT[0]}")
E(f"s_cselect_b32 s{sT[1]}, {packT([20]*4):#x}, s{sT[1]}")
E(f"v_mov_b32 v{t3}, s{sT[0]}")
E(f"v_mov_b32 v{t4}, s{sT[1]}")
E(f"v_cmp_gt_u32 vcc, 32, v{vLANE}")
E(f"v_bfe_u32 v{t5}, v{vLANE}, 2, 2")
E(f"v_lshlrev_b32 v{t0}, 3, v{t5}")
E(f"v_cndmask_b32 v{t3}, v{t4}, v{t3}, vcc")
E(f"v_bfe_u32 v{t0}, v{t3}, v{t0}, 8")
E(f"v_mul_u32_u24 v{t0}, 384, v{t0}")
E(f"v_bfe_u32 v{t1}, v{vLANE}, 4, 1")
E(f"v_and_b32 v{t2}, 3, v{vLANE}")
E(f"v_lshl_add_u32 v{t1}, v{t1}, 2, v{t2}")
E(f"v_mad_u32_u24 v{t0}, v{t1}, 48, v{t0}")
E(f"s_movk_i32 s{sT[2]}, 224")
E(f"v_cmp_gt_u32 vcc, s{sT[2]}, v0")
E("s_nop 1")
E(f"v_cndmask_b32 v{t5}, v{t5}, 2, vcc")
E(f"v_lshl_add_u32 v{vW1}, v{t5}, 4, v{t0}")
L("L_wdone")

C("SRDs")
E("s_waitcnt lgkmcnt(0)")
E(f"s_mov_b32 s{sX}, s4")
E(f"s_and_b32 s{sX+1}, s5, 0xffff")
E(f"s_mov_b32 s{sX+2}, {XBYTES}")
E(f"s_mov_b32 s{sX+3}, 0x20000")
E(f"s_mul_i32 s{sT[0]}, s{sG}, 1152")
E(f"s_add_u32 s{sW}, s6, s{sT[0]}")
E(f"s_addc_u32 s{sW+1}, s7, 0")
E(f"s_and_b32 s{sW+1}, s{sW+1}, 0xffff")
E(f"s_sub_u32 s{sW+2}, {WBYTES}, s{sT[0]}")
E(f"s_mov_b32 s{sW+3}, 0x20000")
E(f"s_mov_b32 s{sO}, s8")
E(f"s_and_b32 s{sO+1}, s9, 0xffff")
E(f"s_mov_b32 s{sO+2}, {XBYTES}")
E(f"s_mov_b32 s{sO+3}, 0x20000")
C("DMA bases")
E(f"s_lshr_b32 s{sT[0]}, s{sWV}, 1")
E(f"s_add_i32 s{sT[1]}, s{sH0}, s{sT[0]}")
E(f"s_add_i32 s{sT[1]}, s{sT[1]}, -3")
E(f"s_mul_i32 s{sXS}, s{sT[1]}, {ROWB}")
E(f"s_mul_i32 s{sXM}, s{sT[0]}, {PB}")
E(f"s_and_b32 s{sT[1]}, s{sWV}, 1")
E(f"s_lshl_b32 s{sT[1]}, s{sT[1]}, 10")
E(f"s_add_u32 s{sXM}, s{sXM}, s{sT[1]}")
E(f"s_lshl_b32 s{sWM}, s{sWV}, 10")
E(f"s_add_u32 s{sWM}, s{sWM}, {WBASE}")

def dma_x(rowE):
    E(f"s_add_u32 m0, s{sXM}, {XBASE + rowE * PB}")
    E(f"s_add_i32 s{sT[8]}, s{sXS}, {rowE * ROWB}")
    E(f"buffer_load_dwordx4 v{vXD}, s[{sX}:{sX+3}], s{sT[8]} offen lds")
def dma_w(i, second, src_i=None):
    if src_i is None: src_i = i
    E(f"s_add_u32 m0, s{sWM}, {(i + 1) * WBLK + (4096 if second else 0)}")
    E(f"s_mov_b32 s{sT[9]}, {src_i * 32256}")
    E(f"buffer_load_dwordx4 v{vW1 if second else vW0}, s[{sW}:{sW+3}], s{sT[9]} offen lds")
stamp()
xorder = [0, 4, 8, 2, 6, 10] + list(range(12, 34, 2))
dma_w(0, 0); dma_w(0, 1); dma_w(-1, 1, 7)
dma_x(0); dma_x(4); dma_x(8)
dma_w(1, 0); dma_w(1, 1)
dma_w(2, 0); dma_w(2, 1)
dma_x(2); dma_x(6); dma_x(10)
for i in range(3, 7):
    dma_w(i, 0); dma_w(i, 1)
dma_w(7, 1, 7)
for r in range(12, 34, 2): dma_x(r)
stamp()

C("weight LDS read addresses")
E(f"v_lshlrev_b32 v{vA}, 3, v{vLANE}")
E(f"v_add_u32 v{vA}, {WBASE + WBLK}, v{vA}")
E(f"v_bfe_u32 v{t0}, v{vLANE}, 2, 2")
E(f"v_and_b32 v{t1}, 1, v{vLANE}")
E(f"v_bfe_u32 v{t2}, v{vLANE}, 1, 1")
E(f"v_lshlrev_b32 v{t0}, 4, v{t0}")
E(f"v_lshl_add_u32 v{t0}, v{t1}, 3, v{t0}")
E(f"s_movk_i32 s{sT[0]}, {WBLK}")
E(f"v_mul_u32_u24 v{t3}, s{sT[0]}, v{t2}")
E(f"v_mul_u32_u24 v{t4}, s{sT[0]}, v{vQ}")
E(f"v_lshl_add_u32 v{vB}, v{vQ}, 6, v{t0}")
E(f"v_sub_u32 v{vB}, v{vB}, v{t3}")
E(f"v_add_u32 v{vB}, {WBASE + WBLK + 5120}, v{vB}")
E(f"v_lshl_add_u32 v{vLA}, v{t2}, 6, v{t0}")
E(f"v_add_u32 v{vLA}, v{vLA}, v{t4}")
E(f"v_add_u32 v{vLA}, {WBASE + 7680}, v{vLA}")
E(f"v_add_u32 v{vLB}, v{t0}, v{t4}")
E(f"v_sub_u32 v{vLB}, v{vLB}, v{t3}")
E(f"v_add_u32 v{vLB}, {WBASE + WBLK + 7680 + 128}, v{vLB}")

C("per-unit x read / out addresses")
q8 = vT[6]; c3 = vT[7]; c4 = vT[8]; cL = vT[9]; c0 = vT[10]; ob = vT[11]
E(f"v_lshlrev_b32 v{q8}, 3, v{vQ}")
E(f"s_mov_b32 s{sT[0]}, {packC(CH[3]):#x}")
E(f"s_mov_b32 s{sT[1]}, {packC(CH[4]):#x}")
E(f"v_bfe_u32 v{c3}, s{sT[0]}, v{q8}, 8")
E(f"v_bfe_u32 v{c4}, s{sT[1]}, v{q8}, 8")
E(f"v_lshlrev_b32 v{c3}, 4, v{c3}")
E(f"v_lshlrev_b32 v{c4}, 4, v{c4}")
E(f"v_mul_u32_u24 v{c0}, 48, v{vQ}")
E(f"s_movk_i32 s{sT[2]}, {PB}")
E(f"v_mul_u32_u24 v{cL}, s{sT[2]}, v{vQ}")
E(f"v_add_u32 v{cL}, 320, v{cL}")
E(f"v_lshrrev_b32 v{t0}, 1, v{vQ}")
E(f"s_mov_b32 s{sT[3]}, {ROWB}")
E(f"v_mul_u32_u24 v{t0}, s{sT[3]}, v{t0}")
E(f"v_and_b32 v{t1}, 1, v{vQ}")
E(f"v_lshl_add_u32 v{ob}, v{t1}, 3, v{t0}")
E(f"v_add_u32 v{ob}, 32, v{ob}")
E(f"s_mul_i32 s{sT[4]}, s{sH0}, {ROWB}")
E(f"s_mul_i32 s{sT[5]}, s{sW0}, 192")
E(f"s_add_u32 s{sT[4]}, s{sT[4]}, s{sT[5]}")
E(f"s_mul_i32 s{sT[5]}, s{sG}, 48")
E(f"s_add_u32 s{sT[4]}, s{sT[4]}, s{sT[5]}")
E(f"s_lshl_b32 s{sT[5]}, s{sWV}, 4")
E(f"s_movk_i32 s{sT[6]}, {4 * PB - 28 * 48}")
E(f"s_mov_b32 s{sT[7]}, {4 * ROWB - 28 * 192}")
for u in range(4):
    if u < 3:
        E(f"s_add_u32 s{sT[8]}, s{sT[5]}, {64 * u + 4}")
        E(f"v_add_u32 v{t0}, s{sT[8]}, v{vN}")
        E(f"v_mul_u32_u24 v{t1}, 0x925, v{t0}")
        E(f"v_lshrrev_b32 v{t1}, 16, v{t1}")
        E(f"v_mul_u32_u24 v{t2}, 48, v{t0}")
        E(f"v_mad_u32_u24 v{t2}, v{t1}, s{sT[6]}, v{t2}")
        E(f"v_mul_u32_u24 v{t3}, 192, v{t0}")
        E(f"v_mad_u32_u24 v{t3}, v{t1}, s{sT[7]}, v{t3}")
    else:
        E(f"v_lshrrev_b32 v{t1}, 2, v{vN}")
        E(f"v_and_b32 v{t0}, 3, v{vN}")
        E(f"v_mul_u32_u24 v{t2}, 48, v{t0}")
        E(f"v_mad_u32_u24 v{t2}, v{t1}, s{sT[2]}, v{t2}")
        E(f"v_mul_u32_u24 v{t3}, 192, v{t0}")
        E(f"v_mad_u32_u24 v{t3}, v{t1}, s{sT[3]}, v{t3}")
    if XBASE: E(f"v_add_u32 v{t2}, {XBASE}, v{t2}")
    E(f"v_add_u32 v{vU[u]['X0']}, v{t2}, v{c0}")
    E(f"v_add_u32 v{vU[u]['X3']}, v{t2}, v{c3}")
    E(f"v_add_u32 v{vU[u]['X4']}, v{t2}, v{c4}")
    E(f"v_add_u32 v{vU[u]['XL']}, v{t2}, v{cL}")
    E(f"v_add_u32 v{t3}, s{sT[4]}, v{t3}")
    E(f"v_add_u32 v{vU[u]['OA']}, v{t3}, v{q8}")
    E(f"v_add_u32 v{vU[u]['OB']}, v{t3}, v{ob}")
    if u == 3:
        E(f"v_cmp_gt_u32 vcc, 2, v{vQ}")
        E(f"v_bfrev_b32 v{t4}, 1")
        E("s_nop 0")
        E(f"v_cndmask_b32 v{vU[u]['OB']}, v{t4}, v{vU[u]['OB']}, vcc")
for h in range(4):
    E(f"s_mov_b32 s{sROW + h}, {h * ROWB}")

stamp()
E("s_waitcnt vmcnt(0)")
stamp()
E("s_barrier")
stamp()
C("load weights to registers")
def wload(f):
    res = []
    for hf in range(2):
        if f[0] == 'A': a, off = vA, WBLK * f[1] + 1024 * f[2] + 512 * hf
        elif f[0] == 'B': a, off = vB, WBLK * f[1] + 512 * f[2] + 256 * hf
        elif f[0] == 'AL': a, off = vLA, WBLK * (f[1] + 1) + 256 * hf
        else: a, off = vLB, WBLK * f[1] + 256 * hf
        res.append(f"ds_read_b64_tr_b16 {wr(f, 2 * hf, 2)}, v{a} offset:{off}")
    return res
for f in frags:
    for s in wload(f): E(s)
E("s_waitcnt lgkmcnt(0)")
stamp()

def acc(t): return f"v[{vACC + 4 * t}:{vACC + 4 * t + 3}]"
TILE = {('A', 0): 0, ('A', 1): 1, ('A', 2): 2, ('A', 3): 3, ('B', 0): 4, ('B', 1): 5}

def unit_groups(u, mode):
    a = vU[u]
    groups = []
    tiles = [('A', h) for h in range(R)] + [('B', k) for k in range(R // 2)]
    nrow = R + 6
    if mode == 'LA': tiles = [('A', 0)]; nrow = 7
    if mode == 'LB': tiles = [('B', 0)]; nrow = 7
    for r in range(nrow):
        for s in range(5):
            if s < 3: rd = (a['X0'], r * PB + 16 * s)
            elif s == 3: rd = (a['X3'], r * PB)
            else: rd = (a['X4'], r * PB)
            ms = []
            for t in tiles:
                if t[0] == 'A':
                    i = r - t[1]
                    if 0 <= i <= 6: ms.append((t, ('A', i, s)))
                else:
                    i = r - 2 * t[1]
                    if 0 <= i <= 7: ms.append((t, ('B', i, s)))
            groups.append((rd, ms))
        for k in range(R // 2):
            for half in range(2):
                r0 = 2 * k + 4 * half
                when = min(r0 + 3, 2 * k + 6)
                if when != r: continue
                ms = []
                for t in tiles:
                    if t == ('A', 2 * k): ms.append((t, ('AL', 4 * half)))
                    if t == ('A', 2 * k + 1): ms.append((t, ('AL', 4 * half - 1)))
                    if t == ('B', k): ms.append((t, ('BL', 4 * half)))
                if ms: groups.append(((a['XL'], r0 * PB), ms))
    return groups

def emit_stream(units):
    G = []
    for (u, mode) in units:
        g = unit_groups(u, mode)
        cnt = {}
        for rd, ms in g:
            for t, w in ms: cnt[t] = cnt.get(t, 0) + 1
        seen = {}
        for rd, ms in g:
            mm = []
            for t, w in ms:
                seen[t] = seen.get(t, 0) + 1
                mm.append((u, t, w, seen[t] == 1, seen[t] == cnt[t]))
            G.append((rd, mm))
    PRE = NX - 2
    issued = 0
    def xreg(k): return f"v[{vXB + 4 * (k % NX)}:{vXB + 4 * (k % NX) + 3}]"
    def issue():
        nonlocal issued
        if issued < len(G):
            (a, off), _ = G[issued]
            E(f"ds_read_b128 {xreg(issued)}, v{a} offset:{off}")
            issued += 1
    for _ in range(min(PRE, len(G))): issue()
    pending = []
    def tick():
        for p in pending: p[0] -= 1
        while pending and pending[0][0] <= 0:
            p = pending.pop(0)
            for s in p[1]: E(s)
            break
    for k, (rd, ms) in enumerate(G):
        E(f"s_waitcnt lgkmcnt({min(15, issued - k - 1)})")
        for n, (u, t, w, first, last) in enumerate(ms):
            ti = TILE[t]
            E(f"v_mfma_f32_16x16x32_bf16 {acc(ti)}, {wr(w)}, {xreg(k)}, {'0' if first else acc(ti)}")
            if n == 0: issue()
            tick()
            if last:
                b = vACC + 4 * ti; c = vCV + 2 * ti
                od = vU[u]['OA'] if t[0] == 'A' else vU[u]['OB']
                so = sROW + (t[1] if t[0] == 'A' else 2 * t[1])
                pending.append([8, [f"v_cvt_pk_bf16_f32 v{c}, v{b}, v{b+1}"]])
                pending.append([8, [f"v_cvt_pk_bf16_f32 v{c+1}, v{b+2}, v{b+3}"]])
                pending.append([8, [f"buffer_store_dwordx2 v[{c}:{c+1}], v{od}, s[{sO}:{sO+3}], s{so} offen"]])
    if pending:
        E("s_nop 7")
        for p in pending:
            for s in p[1]: E(s)

emit_stream([(0, 'F'), (1, 'F'), (2, 'F')])
stamp()
E(f"s_cmp_eq_u32 s{sWV}, 0")
E("s_cbranch_scc1 L_la")
E(f"s_cmp_eq_u32 s{sWV}, 1")
E("s_cbranch_scc0 L_fin")
emit_stream([(3, 'LB')])
E("s_branch L_fin")
L("L_la")
emit_stream([(3, 'LA')])
L("L_fin")
stamp()
if DIAG:
    E("s_waitcnt vmcnt(0)")
    stamp()
    E(f"s_memrealtime s[{sST+2*nstamp[0]}:{sST+2*nstamp[0]+1}]")
    nstamp[0] += 1
    E(f"s_getreg_b32 s{sST+2*nstamp[0]}, hwreg(HW_REG_XCC_ID)")
    E(f"s_getreg_b32 s{sST+2*nstamp[0]+1}, hwreg(HW_REG_HW_ID)")
    nstamp[0] += 1
    E("s_waitcnt lgkmcnt(0)")
    E(f"s_mov_b32 s{sX}, s10")
    E(f"s_and_b32 s{sX+1}, s11, 0xffff")
    E(f"s_mov_b32 s{sX+2}, 0x100000")
    E(f"s_mov_b32 s{sX+3}, 0x20000")
    E(f"s_lshl_b32 s{sT[0]}, s2, 2")
    E(f"s_add_u32 s{sT[0]}, s{sT[0]}, s{sWV}")
    E(f"s_lshl_b32 s{sT[0]}, s{sT[0]}, 8")
    E(f"v_lshlrev_b32 v4, 20, v{vLANE}")
    if DIAG == 2:
        E(f"s_mov_b32 s{sX+2}, 256")
        E(f"s_not_b32 s{sT[1]}, s{sST}")
        E(f"v_mov_b32 v6, s{sT[1]}")
        E(f"v_mov_b32 v7, s{sST + 2 * (nstamp[0]-2)}")
        E(f"buffer_atomic_umax v6, v4, s[{sX}:{sX+3}], 0 offen")
        E(f"buffer_atomic_umax v7, v4, s[{sX}:{sX+3}], 0 offen offset:4")
        for k in range(2, nstamp[0]-2):
            E(f"s_sub_u32 s{sT[1]}, s{sST + 2 * k}, s{sST + 2}")
            E(f"v_mov_b32 v6, s{sT[1]}")
            E(f"buffer_atomic_umax v6, v4, s[{sX}:{sX+3}], 0 offen offset:{4 * k}")
            E("s_nop 1")
    for k in range(nstamp[0] if DIAG == 1 else 0):
        E(f"v_mov_b32 v6, s{sST + 2 * k}")
        E(f"v_mov_b32 v7, s{sST + 2 * k + 1}")
        E(f"buffer_store_dwordx2 v[6:7], v4, s[{sX}:{sX+3}], s{sT[0]} offen offset:{8 * k}")
        E("s_nop 1")
L("L_end")
E("s_endpgm")

tail = f""".section .rodata,"a"
.p2align 6
.amdhsa_kernel {NAME}
  .amdhsa_next_free_vgpr 512
  .amdhsa_next_free_sgpr 102
  .amdhsa_accum_offset 256
  .amdhsa_group_segment_fixed_size 0
  .amdhsa_kernarg_size 40
  .amdhsa_user_sgpr_count 2
  .amdhsa_user_sgpr_kernarg_segment_ptr 1
  .amdhsa_system_sgpr_workgroup_id_x 1
.end_amdhsa_kernel
"""
open(sys.argv[1], "w").write(hdr + "\n" + "\n".join(out) + "\n" + tail)
print("LDS", LDS_TOTAL, "lines", len(out), "stamps", nstamp[0])
```
